```python
import torch

def _softmax(x, axis=-1):
    return torch.softmax(x, dim=axis)
def _gelu(x):
    return torch.nn.functional.gelu(x, approximate="tanh")
def _silu(x):
    return torch.nn.functional.silu(x)
def _sigmoid(x):
    return torch.sigmoid(x)
def _layernorm(x, axis=-1, eps=1e-5):
    m = x.mean(dim=axis, keepdim=True)
    v = x.var(dim=axis, keepdim=True, unbiased=False)
    return (x - m) / torch.sqrt(v + eps)
def _scatter_add(tgt, idx, src, axis=0):
    return tgt.clone().index_add_(axis, idx, src)
def _segment_sum(src, seg, n):
    out = torch.zeros((n,) + src.shape[1:], dtype=src.dtype)
    return out.index_add_(0, seg, src)
def _pad(x, pw):
    flat = tuple(v for pair in reversed(pw) for v in pair)
    return torch.nn.functional.pad(x, flat)

kernel_name = 'standalone__deepnorm__sampling'

def setup_inputs():

    _w = (lambda a: (lambda t: t.to(torch.bfloat16) if t.is_floating_point() else t)(torch.as_tensor(a)))
    B, S, D = 1024, 4, 1024
    return {
        "x": _w((lambda *s: torch.randn(*s, dtype=torch.bfloat16) * 0.05)(B, S, D)),
        "f": _w((lambda *s: torch.randn(*s, dtype=torch.bfloat16) * 0.05)(B, S, D)),
        "g": _w((lambda *s: torch.randn(*s, dtype=torch.bfloat16) * 0.05)(D) + 1.0),
        "b": _w((lambda *s: torch.randn(*s, dtype=torch.bfloat16) * 0.4)(D)),
        "alpha": _w(float(2.0)),
    }

def reference(x, f, g, b, alpha):
    return _layernorm(alpha * x + f, axis=-1) * g + b
```

```python
import sys, argparse

HEADER = """; Kernarg layout for this problem (64 bytes, ptrs only, base s[0:1]):
"""
NAME = "standalone__deepnorm__sampling_kernel"

PROBE_KD = """.p2align 6
.amdhsa_kernel probe_kernel
  .amdhsa_next_free_vgpr 80
  .amdhsa_next_free_sgpr 48
  .amdhsa_accum_offset 80
  .amdhsa_group_segment_fixed_size 0
  .amdhsa_kernarg_size 64
  .amdhsa_user_sgpr_count 2
  .amdhsa_user_sgpr_kernarg_segment_ptr 1
  .amdhsa_system_sgpr_workgroup_id_x 1
.end_amdhsa_kernel"""

def probe_code(a, amode, b, bmode, K, nw=4096):
    L = []
    e = L.append
    e(".globl probe_kernel")
    e(".p2align 8")
    e(".type probe_kernel,@function")
    e("probe_kernel:")
    e("    s_memrealtime s[20:21]")
    e("    s_load_dwordx4 s[4:7], s[0:1], 48")
    e("    s_cmp_ge_u32 s2, 1")
    e("    s_cbranch_scc1 L_pend")
    e("    s_waitcnt lgkmcnt(0)")
    e("    s_load_dword s8, s[6:7], 0")
    e("    v_lshlrev_b32 v1, 6, v0")
    opa = "v_min_i32" if amode == "min" else "v_max_i32"
    opb = "v_min_i32" if bmode == "min" else "v_max_i32"
    e(f"    v_mov_b32 v2, {'0x7fffffff' if amode == 'min' else '0x80000000'}")
    e(f"    v_mov_b32 v3, {'0x7fffffff' if bmode == 'min' else '0x80000000'}")
    e("    s_waitcnt lgkmcnt(0)")
    nb = nw // 64 // 16
    for blk in range(nb):
        for i in range(16):
            e(f"    global_load_dword v{8+2*i}, v1, s[6:7] offset:{4*a}")
            e(f"    global_load_dword v{9+2*i}, v1, s[6:7] offset:{4*max(b,0)}")
            e(f"    v_add_u32 v1, 0x1000, v1")
        e("    s_waitcnt vmcnt(0)")
        for i in range(16):
            e(f"    v_subrev_u32 v{8+2*i}, s8, v{8+2*i}")
            e(f"    v_subrev_u32 v{9+2*i}, s8, v{9+2*i}")
            e(f"    {opa} v2, v2, v{8+2*i}")
            e(f"    {opb} v3, v3, v{9+2*i}")
    for ctl in ["quad_perm:[1,0,3,2] row_mask:0xf", "quad_perm:[2,3,0,1] row_mask:0xf",
                "row_half_mirror row_mask:0xf", "row_mirror row_mask:0xf",
                "row_bcast:15 row_mask:0xa", "row_bcast:31 row_mask:0xc"]:
        e("    s_nop 1")
        e(f"    {opa}_dpp v2, v2, v2 {ctl} bank_mask:0xf")
        e(f"    {opb}_dpp v3, v3, v3 {ctl} bank_mask:0xf")
    e("    s_nop 1")
    e("    v_readlane_b32 s10, v2, 63")
    e("    v_readlane_b32 s11, v3, 63")
    e("    s_nop 3")
    if b < 0:
        e("    s_sub_u32 s11, s20, s8")
    e("    s_sub_u32 s12, s11, s10")
    e("    s_max_i32 s12, s12, 0")
    e("    s_min_u32 s12, s12, 4000")
    e("    v_mov_b32 v4, s12")
    e("    v_mov_b32 v5, 0")
    e("    global_store_dword v5, v4, s[4:5]")
    e(f"    s_mul_i32 s12, s12, {K}")
    e("    s_memrealtime s[14:15]")
    e("    s_waitcnt lgkmcnt(0)")
    e("L_spin:")
    e("    s_memrealtime s[16:17]")
    e("    s_waitcnt lgkmcnt(0)")
    e("    s_sub_u32 s18, s16, s14")
    e("    s_cmp_lt_u32 s18, s12")
    e("    s_cbranch_scc1 L_spin")
    e("L_pend:")
    e("    s_endpgm")
    return "\n".join(L)

def gen(wpb=4, ldx="", ldgb="", st="", nvgpr=None, stamps=False, empty=False, probe=None, align=8, prepad=0):
    nwg = 4096 // wpb
    L = []
    e = L.append
    if probe:
        e(HEADER + f"; @launch kernel={NAME} grid=({nwg},1,1) block=({wpb*64},1,1) lds=0")
        e("; @launch kernel=probe_kernel grid=(1,1,1) block=(64,1,1) lds=0")
    else:
        e(HEADER + f"; @launch grid=({nwg},1,1) block=({wpb*64},1,1) lds=0")
    e('.amdgcn_target "amdgcn-amd-amdhsa--gfx950"')
    e(".text")
    e(f".globl {NAME}")
    if align > 8:
        e(f".p2align {align}")
    if prepad:
        e(f".fill {prepad//4}, 4, 0xbf810000")
    e(".p2align 8")
    e(f".type {NAME},@function")
    e(f"{NAME}:")
    def stamp(i):
        if stamps == "full" or (stamps == "light" and i == 0) or (stamps == "ends" and i in (0, 5)):
            e(f"    s_memrealtime s[{32+2*i}:{33+2*i}]")
    def finish_stamps(n):
        if not stamps: return
        if stamps == "ends":
            e("    s_load_dwordx2 s[30:31], s[0:1], 56")
            e(f"    v_lshrrev_b32 v3, 6, v0")
            e(f"    s_lshl_b32 s3, s2, {wpb.bit_length()-1}")
            e(f"    v_add_u32 v3, s3, v3")
            e(f"    v_lshlrev_b32 v3, 6, v3")
            e("    s_waitcnt lgkmcnt(0)")
            e(f"    v_mov_b32 v4, s32")
            e(f"    v_mov_b32 v5, s42")
            e(f"    global_store_dwordx2 v3, v[4:5], s[30:31]")
            return
        if stamps == "light":
            e("    s_load_dwordx2 s[30:31], s[0:1], 56")
            e(f"    v_lshrrev_b32 v3, 6, v0")
            e(f"    s_lshl_b32 s3, s2, {wpb.bit_length()-1}")
            e(f"    v_add_u32 v3, s3, v3")
            e(f"    v_lshlrev_b32 v3, 6, v3")
            e(f"    v_mov_b32 v4, s32")
            e("    s_waitcnt lgkmcnt(0)")
            e(f"    global_store_dword v3, v4, s[30:31]")
            return
        e("    s_load_dwordx2 s[30:31], s[0:1], 56")
        e("    s_waitcnt lgkmcnt(0)")
        e(f"    v_lshrrev_b32 v3, 6, v0")
        e(f"    s_lshl_b32 s3, s2, {wpb.bit_length()-1}")
        e(f"    v_add_u32 v3, s3, v3")
        e(f"    v_lshlrev_b32 v3, 6, v3")
        e("    s_getreg_b32 s28, hwreg(HW_REG_XCC_ID)")
        e("    s_getreg_b32 s29, hwreg(HW_REG_HW_ID)")
        e("    v_mov_b32 v4, s28")
        e("    v_mov_b32 v5, s29")
        e("    global_store_dwordx2 v3, v[4:5], s[30:31] offset:56")
        e("    s_nop 1")
        for i in range(n):
            e(f"    v_mov_b32 v4, s{32+2*i}")
            e(f"    global_store_dword v3, v4, s[30:31] offset:{4*i}")
            e(f"    s_nop 1")
    stamp(0)
    e("    s_load_dwordx8 s[4:11], s[0:1], 0")
    e("    s_load_dwordx4 s[12:15], s[0:1], 32")
    e(f"    s_cmp_ge_u32 s2, {nwg}")
    e("    s_cbranch_scc1 L_end")
    sh = 11 + (wpb.bit_length() - 1)
    e(f"    s_lshl_b32 s3, s2, {sh}")
    if wpb == 1:
        e("    v_lshlrev_b32 v2, 4, v0              ; lane*16")
        e("    v_add_u32 v1, s3, v2")
    else:
        e("    v_and_b32 v2, 63, v0")
        e("    v_lshrrev_b32 v1, 6, v0")
        e("    v_lshlrev_b32 v2, 4, v2              ; lane*16")
        e("    v_lshl_add_u32 v1, v1, 11, v2")
        e("    v_add_u32 v1, s3, v1")
    e("    s_mov_b32 s16, 0xffff0000")
    e("    s_waitcnt lgkmcnt(0)")
    stamp(1)
    if empty:
        finish_stamps(2)
        e("    s_endpgm")
    X = [4, 8]; F = [12, 16]; G = [20, 24]; B = [28, 32]; H = 36
    e(f"    global_load_dwordx4 v[{X[0]}:{X[0]+3}], v1, s[4:5] {ldx}")
    e(f"    global_load_dwordx4 v[{F[0]}:{F[0]+3}], v1, s[6:7] {ldx}")
    e(f"    global_load_dwordx4 v[{X[1]}:{X[1]+3}], v1, s[4:5] offset:1024 {ldx}")
    e(f"    global_load_dwordx4 v[{F[1]}:{F[1]+3}], v1, s[6:7] offset:1024 {ldx}")
    stamp(6)
    e("    s_load_dword s17, s[12:13], 0")
    e(f"    global_load_dwordx4 v[{G[0]}:{G[0]+3}], v2, s[8:9] {ldgb}")
    e(f"    global_load_dwordx4 v[{G[1]}:{G[1]+3}], v2, s[8:9] offset:1024 {ldgb}")
    e(f"    global_load_dwordx4 v[{B[0]}:{B[0]+3}], v2, s[10:11] {ldgb}")
    e(f"    global_load_dwordx4 v[{B[1]}:{B[1]+3}], v2, s[10:11] offset:1024 {ldgb}")
    e("    s_waitcnt lgkmcnt(0)")
    e("    s_lshl_b32 s18, s17, 16")
    stamp(8)
    T = 52
    for half in range(2):
        e(f"    s_waitcnt vmcnt({6 - 2*half})")
        if half == 0: stamp(7)
        for j in range(4):
            h = H + half*8 + 2*j
            x = X[half] + j; f = F[half] + j
            e(f"    v_lshlrev_b32 v{T}, 16, v{x}")
            e(f"    v_and_b32 v{T+1}, s16, v{x}")
            e(f"    v_lshlrev_b32 v{h}, 16, v{f}")
            e(f"    v_and_b32 v{h+1}, s16, v{f}")
            e(f"    v_pk_fma_f32 v[{h}:{h+1}], v[{T}:{T+1}], s[18:19], v[{h}:{h+1}] op_sel_hi:[1,0,1]")
    stamp(2)
    e(f"    v_pk_add_f32 v[4:5], v[{H}:{H+1}], v[{H+2}:{H+3}]")
    e(f"    v_pk_add_f32 v[6:7], v[{H+4}:{H+5}], v[{H+6}:{H+7}]")
    e(f"    v_pk_add_f32 v[8:9], v[{H+8}:{H+9}], v[{H+10}:{H+11}]")
    e(f"    v_pk_add_f32 v[10:11], v[{H+12}:{H+13}], v[{H+14}:{H+15}]")
    e("    v_pk_add_f32 v[4:5], v[4:5], v[6:7]")
    e("    v_pk_add_f32 v[8:9], v[8:9], v[10:11]")
    e("    v_pk_add_f32 v[4:5], v[4:5], v[8:9]")
    e("    v_add_f32 v4, v4, v5")
    def reduce(v, s):
        for ctl in ["quad_perm:[1,0,3,2] row_mask:0xf", "quad_perm:[2,3,0,1] row_mask:0xf",
                    "row_half_mirror row_mask:0xf", "row_mirror row_mask:0xf",
                    "row_bcast:15 row_mask:0xa", "row_bcast:31 row_mask:0xc"]:
            e("    s_nop 1")
            e(f"    v_add_f32_dpp v{v}, v{v}, v{v} {ctl} bank_mask:0xf")
        e("    s_nop 0")
        e(f"    v_readlane_b32 s{s}, v{v}, 63")
    reduce(4, 20)
    e("    v_mov_b32 v5, 0xba800000             ; -1/1024")
    e("    s_nop 0")
    e("    v_mul_f32 v4, s20, v5                ; -mean")
    for j in range(8):
        h = H + 2*j
        e(f"    v_pk_add_f32 v[{h}:{h+1}], v[{h}:{h+1}], v[4:5] op_sel_hi:[1,0]")
    e(f"    v_pk_mul_f32 v[6:7], v[{H}:{H+1}], v[{H}:{H+1}]")
    e(f"    v_pk_mul_f32 v[8:9], v[{H+2}:{H+3}], v[{H+2}:{H+3}]")
    for j in range(2, 8):
        h = H + 2*j
        a = 6 if j % 2 == 0 else 8
        e(f"    v_pk_fma_f32 v[{a}:{a+1}], v[{h}:{h+1}], v[{h}:{h+1}], v[{a}:{a+1}]")
    e("    v_pk_add_f32 v[6:7], v[6:7], v[8:9]")
    e("    v_add_f32 v6, v6, v7")
    reduce(6, 21)
    e("    v_mov_b32 v5, 0x3a800000             ; 1/1024")
    e("    v_mov_b32 v7, 0x3727c5ac             ; eps = 1e-5")
    e("    v_fma_f32 v6, s21, v5, v7")
    e("    v_rsq_f32 v6, v6")
    e("    s_waitcnt vmcnt(0)")
    stamp(3)
    for half in range(2):
        for j in range(4):
            h = H + half*8 + 2*j
            g = G[half] + j; b = B[half] + j
            e(f"    v_pk_mul_f32 v[{h}:{h+1}], v[{h}:{h+1}], v[6:7] op_sel_hi:[1,0]")
            e(f"    v_lshlrev_b32 v{T}, 16, v{g}")
            e(f"    v_and_b32 v{T+1}, s16, v{g}")
            e(f"    v_lshlrev_b32 v{T+2}, 16, v{b}")
            e(f"    v_and_b32 v{T+3}, s16, v{b}")
            e(f"    v_pk_fma_f32 v[{h}:{h+1}], v[{h}:{h+1}], v[{T}:{T+1}], v[{T+2}:{T+3}]")
            e(f"    v_cvt_pk_bf16_f32 v{F[half]+j}, v{h}, v{h+1}")
        off = "offset:1024 " if half else ""
        e(f"    global_store_dwordx4 v1, v[{F[half]}:{F[half]+3}], s[14:15] {off}{st}")
    stamp(4)
    if stamps and stamps != "light":
        e("    s_waitcnt vmcnt(0)")
    stamp(5)
    finish_stamps(9)
    e("L_end:")
    e("    s_endpgm")
    if probe:
        L.append(probe_code(*probe))
    nv = nvgpr or 56
    e('.section .rodata,"a"')
    e(".p2align 6")
    e(f".amdhsa_kernel {NAME}")
    e(f"  .amdhsa_next_free_vgpr {nv}")
    e("  .amdhsa_next_free_sgpr 64")
    e(f"  .amdhsa_accum_offset {(nv+3)//4*4}")
    e("  .amdhsa_group_segment_fixed_size 0")
    e("  .amdhsa_kernarg_size 64")
    e("  .amdhsa_user_sgpr_count 2")
    e("  .amdhsa_user_sgpr_kernarg_segment_ptr 1")
    e("  .amdhsa_system_sgpr_workgroup_id_x 1")
    e("  .amdhsa_float_denorm_mode_32 3")
    e(".end_amdhsa_kernel")
    if probe:
        e(PROBE_KD)
    return "\n".join(L) + "\n"

if __name__ == "__main__":
    ap = argparse.ArgumentParser()
    ap.add_argument("-o", required=True)
    ap.add_argument("--wpb", type=int, default=4)
    ap.add_argument("--ldx", default="")
    ap.add_argument("--ldgb", default="")
    ap.add_argument("--st", default="")
    ap.add_argument("--stamps", default="")
    ap.add_argument("--empty", action="store_true")
    ap.add_argument("--probe", default=None)
    ap.add_argument("--nv", type=int, default=None)
    ap.add_argument("--align", type=int, default=8)
    ap.add_argument("--prepad", type=int, default=0)
    a = ap.parse_args()
    pr = None
    if a.probe:
        p = a.probe.split(",")
        pr = (int(p[0]), p[1], int(p[2]), p[3], int(p[4]))
    open(a.o, "w").write(gen(a.wpb, a.ldx, a.ldgb, a.st, a.nv, stamps=a.stamps, empty=a.empty, probe=pr, align=a.align, prepad=a.prepad))
```

```python
from gen import HEADER, NAME
L = []; e = L.append
e(HEADER + "; @launch grid=(256,1,1) block=(512,1,1) lds=0")
e(""";
;
;
;
;       v[120:123] row-sum accumulator""")
e('.amdgcn_target "amdgcn-amd-amdhsa--gfx950"')
e(".text")
e(f".globl {NAME}")
e(".p2align 12                               ; keep the whole kernel inside one 4 KiB page of code")
e(".p2align 8")
e(f".type {NAME},@function")
e(f"{NAME}:")
def I(s, c=""):
    e(("    " + s).ljust(86) + ("; " + c if c else "") if c else "    " + s)
def C(c): e("    ; " + c)
I("s_load_dwordx8 s[4:11], s[0:1], 0", "x f g b")
I("s_load_dwordx4 s[12:15], s[0:1], 32", "alpha out")
I("s_cmpk_ge_u32 s2, 256", "workgroups past the data leave")
I("s_cbranch_scc1 L_end")
I("s_lshl_b32 s3, s2, 14", "8 rows of 2 KiB")
I("v_lshlrev_b32 v2, 4, v0", "wave*1024 + lane*16")
I("s_movk_i32 s16, 0xfc00")
I("v_and_b32 v3, s16, v2", "wave*1024")
I("v_add3_u32 v1, v2, v3, s3", "row*2048 + lane*16")
I("v_sub_u32 v2, v2, v3", "lane*16")
I("s_waitcnt lgkmcnt(0)")
def loads(b, a):
    I(f"global_load_dwordx4 v[{b}:{b+3}], {a}, s[4:5]", "x lo")
    I(f"global_load_dwordx4 v[{b+4}:{b+7}], {a}, s[6:7]", "f lo")
    I(f"global_load_dwordx4 v[{b+8}:{b+11}], {a}, s[4:5] offset:1024", "x hi")
    I(f"global_load_dwordx4 v[{b+12}:{b+15}], {a}, s[6:7] offset:1024", "f hi")
loads(4, "v1")
I("s_load_dword s17, s[12:13], 0", "alpha in the low 16 bits")
I("global_load_dwordx4 v[36:39], v2, s[8:9]", "g lo")
I("global_load_dwordx4 v[40:43], v2, s[8:9] offset:1024", "g hi")
I("global_load_dwordx4 v[44:47], v2, s[10:11]", "b lo")
I("global_load_dwordx4 v[48:51], v2, s[10:11] offset:1024", "b hi")
C("---- constants, built while the first row is in flight")
I("v_xor_b32 v125, 0x402000, v1", "row 1")
I("s_mov_b32 s16, 0xffff0000")
for j in range(4): I(f"v_mov_b32 v{116+j}, 0xba80ba80", "bf16 pair of -1/1024" if j == 0 else "")
I("v_and_b32 v3, 3, v0")
I("v_lshlrev_b32 v3, 4, v3", "16*(lane&3)")
I("v_mov_b32 v100, 0x3f80")
I("v_mov_b32 v101, 0")
I("v_lshlrev_b64 v[110:111], v3, v[100:101]", "row (lane&3) of the 4x4 identity")
I("s_waitcnt lgkmcnt(0)")
I("s_lshl_b32 s18, s17, 16", "alpha as fp32")
I("v_mov_b32 v105, 0xba800000", "-1/1024")
I("v_mul_f32 v112, s18, v105", "-alpha/1024: power-of-two scale, still a bf16 value")
I("v_lshrrev_b32 v113, 16, v112")
I("v_and_or_b32 v112, v112, s16, v113", "bf16 pair of it")
for j in range(1, 4): I(f"v_mov_b32 v{112+j}, v112")
I("s_and_b32 s17, s17, 0xffff")
I("v_mov_b32 v100, s17")
I("v_lshlrev_b64 v[108:109], v3, v[100:101]", "row (lane&3) of alpha*I")
I("v_mov_b32 v106, 0x3a800000", "1/1024")
I("v_mov_b32 v107, 0x3727c5ac", "eps = 1e-5")
H = 84; T = 100
DPP = ["quad_perm:[1,0,3,2]", "quad_perm:[2,3,0,1]", "row_half_mirror", "row_mirror"]
def m4(d, a, s, acc, c=""): I(f"v_mfma_f32_4x4x4_16b_bf16 v[{d}:{d+3}], v[{a}:{a+1}], v[{s}:{s+1}], " + (f"v[{d}:{d+3}]" if acc else "0"), c)
def m16(a, s, acc, c=""): I(f"v_mfma_f32_16x16x32_bf16 v[120:123], v[{a}:{a+3}], v[{s}:{s+3}], " + ("v[120:123]" if acc else "0"), c)
def dpp(i, src=T, c=""): I(f"v_add_f32_dpp v{T}, v{src}, v{src} {DPP[i]} row_mask:0xf bank_mask:0xf", c)
def centre():
    C("d = h - mean, then sum of d*d")
    for j in range(8): I(f"v_pk_add_f32 v[{H+2*j}:{H+2*j+1}], v[{H+2*j}:{H+2*j+1}], v[{T}:{T+1}] op_sel_hi:[1,0]")
    I(f"v_pk_mul_f32 v[{T}:{T+1}], v[{H}:{H+1}], v[{H}:{H+1}]")
    for j in range(1, 8): I(f"v_pk_fma_f32 v[{T}:{T+1}], v[{H+2*j}:{H+2*j+1}], v[{H+2*j}:{H+2*j+1}], v[{T}:{T+1}]")
    I(f"v_add_f32 v{T}, v{T}, v{T+1}")
def finish(b, a):
    C("d *= g fills the wait states of the cross-lane sum")
    for i in range(4):
        for j in (2*i, 2*i+1): I(f"v_pk_mul_f32 v[{H+2*j}:{H+2*j+1}], v[{H+2*j}:{H+2*j+1}], v[{52+2*j}:{53+2*j}]")
        dpp(i)
    I("s_nop 0")
    for i in range(4): I(f"v_readlane_b32 s{20+i}, v{T}, {16*i}")
    I(f"v_fma_f32 v{T}, s20, v106, v107")
    for i in range(1, 4): I(f"v_fmac_f32 v{T}, s{20+i}, v106", "var + eps" if i == 3 else "")
    I(f"v_rsq_f32 v{T}, v{T}")
    I("s_nop 0")
    C("out = d*g*rstd + b")
    for half in range(2):
        for j in range(4):
            h = H + 8*half + 2*j; k = 68 + 8*half + 2*j
            I(f"v_pk_fma_f32 v[{h}:{h+1}], v[{h}:{h+1}], v[{T}:{T+1}], v[{k}:{k+1}] op_sel_hi:[1,0,1]")
            I(f"v_cvt_pk_bf16_f32 v{b+4+4*half+j}, v{h}, v{h+1}")
        I(f"global_store_dwordx4 {a}, v[{b+4+4*half}:{b+7+4*half}], s[14:15]" + (" offset:1024" if half else ""))
C("======== row 0")
b = 4
I("s_waitcnt vmcnt(6)", "x lo, f lo")
m16(112, b, False); m16(116, b+4, True)
m4(H, 108, b, False); m4(H+4, 108, b+2, False)
I("s_nop 0")
m4(H, 110, b+4, True); m4(H+4, 110, b+6, True)
I("s_waitcnt vmcnt(4)", "x hi, f hi")
m16(112, b+8, True); m16(116, b+12, True)
I("s_nop 7", "MFMA result -> VALU read")
dpp(0, 120)
m4(H+8, 108, b+8, False); m4(H+12, 108, b+10, False)
dpp(1)
m4(H+8, 110, b+12, True); m4(H+12, 110, b+14, True)
dpp(2)
I("s_nop 1")
dpp(3, T, "-mean in every lane")
centre()
C("row 1 goes in flight")
loads(20, "v125")
I("s_waitcnt vmcnt(4)", "g, b")
for j in range(16):
    I(f"v_lshlrev_b32 v{52+2*j}, 16, v{36+j}")
    I(f"v_and_b32 v{53+2*j}, s16, v{36+j}")
finish(b, "v1")
C("======== row 1 (each piece is consumed as it lands; the two stores of row 0 are the youngest operations)")
b = 20
I("s_waitcnt vmcnt(5)", "x lo")
m16(112, b, False); m4(H, 108, b, False); m4(H+4, 108, b+2, False)
I("s_waitcnt vmcnt(4)", "f lo")
m16(116, b+4, True); m4(H, 110, b+4, True); m4(H+4, 110, b+6, True)
I("s_waitcnt vmcnt(3)", "x hi")
m16(112, b+8, True); m4(H+8, 108, b+8, False); m4(H+12, 108, b+10, False)
I("s_waitcnt vmcnt(2)", "f hi")
m16(116, b+12, True)
I("s_nop 7", "MFMA result -> VALU read")
dpp(0, 120)
m4(H+8, 110, b+12, True); m4(H+12, 110, b+14, True)
dpp(1)
I("s_nop 1")
dpp(2)
I("s_nop 1")
dpp(3, T, "-mean in every lane")
centre()
finish(b, "v125")
e("L_end:")
I("s_endpgm")
e('.section .rodata,"a"')
e(".p2align 6")
e(f".amdhsa_kernel {NAME}")
for l in ["next_free_vgpr 126", "next_free_sgpr 24", "accum_offset 128", "group_segment_fixed_size 0", "kernarg_size 64",
          "user_sgpr_count 2", "user_sgpr_kernarg_segment_ptr 1", "system_sgpr_workgroup_id_x 1", "float_denorm_mode_32 3"]:
    e("  .amdhsa_" + l)
e(".end_amdhsa_kernel")
open("standalone__deepnorm__sampling.s", "w").write("\n".join(L) + "\n")
```

```python
from gen import HEADER, NAME
L = []; e = L.append
e(HEADER + "; @launch grid=(256,1,1) block=(512,1,1) lds=0")
e(""";
;
;
;
;       v[120:123] row-sum accumulator""")
e('.amdgcn_target "amdgcn-amd-amdhsa--gfx950"')
e(".text")
e(f".globl {NAME}")
e(".p2align 12                               ; keep the whole kernel inside one 4 KiB page of code")
e(".p2align 8")
e(f".type {NAME},@function")
e(f"{NAME}:")
def I(s, c=""):
    e(("    " + s).ljust(86) + ("; " + c if c else "") if c else "    " + s)
def C(c): e("    ; " + c)
I("s_load_dwordx8 s[4:11], s[0:1], 0", "x f g b")
I("s_load_dwordx4 s[12:15], s[0:1], 32", "alpha out")
I("s_cmpk_ge_u32 s2, 256", "workgroups past the data leave")
I("s_cbranch_scc1 L_end")
I("s_lshl_b32 s3, s2, 14", "8 rows of 2 KiB")
I("v_lshlrev_b32 v2, 4, v0", "wave*1024 + lane*16")
I("s_movk_i32 s16, 0xfc00")
I("v_and_b32 v3, s16, v2", "wave*1024")
I("v_add3_u32 v1, v2, v3, s3", "row*2048 + lane*16")
I("v_sub_u32 v2, v2, v3", "lane*16")
I("s_waitcnt lgkmcnt(0)")
def loads(b, a):
    I(f"global_load_dwordx4 v[{b}:{b+3}], {a}, s[4:5] nt", "x lo")
    I(f"global_load_dwordx4 v[{b+4}:{b+7}], {a}, s[6:7] nt", "f lo")
    I(f"global_load_dwordx4 v[{b+8}:{b+11}], {a}, s[4:5] offset:1024 nt", "x hi")
    I(f"global_load_dwordx4 v[{b+12}:{b+15}], {a}, s[6:7] offset:1024 nt", "f hi")
loads(4, "v1")
I("s_load_dword s17, s[12:13], 0", "alpha in the low 16 bits")
I("global_load_dwordx4 v[36:39], v2, s[8:9]", "g lo")
I("global_load_dwordx4 v[40:43], v2, s[8:9] offset:1024", "g hi")
I("global_load_dwordx4 v[44:47], v2, s[10:11]", "b lo")
I("global_load_dwordx4 v[48:51], v2, s[10:11] offset:1024", "b hi")
C("---- constants, built while the first row is in flight")
I("v_xor_b32 v125, 0x402000, v1", "row 1")
I("s_mov_b32 s16, 0xffff0000")
for j in range(4): I(f"v_mov_b32 v{116+j}, 0xba80ba80", "bf16 pair of -1/1024" if j == 0 else "")
I("v_and_b32 v3, 3, v0")
I("v_lshlrev_b32 v3, 4, v3", "16*(lane&3)")
I("v_mov_b32 v100, 0x3f80")
I("v_mov_b32 v101, 0")
I("v_lshlrev_b64 v[110:111], v3, v[100:101]", "row (lane&3) of the 4x4 identity")
I("s_waitcnt lgkmcnt(0)")
I("s_lshl_b32 s18, s17, 16", "alpha as fp32")
I("v_mov_b32 v105, 0xba800000", "-1/1024")
I("v_mul_f32 v112, s18, v105", "-alpha/1024: power-of-two scale, still a bf16 value")
I("v_lshrrev_b32 v113, 16, v112")
I("v_and_or_b32 v112, v112, s16, v113", "bf16 pair of it")
for j in range(1, 4): I(f"v_mov_b32 v{112+j}, v112")
I("s_and_b32 s17, s17, 0xffff")
I("v_mov_b32 v100, s17")
I("v_lshlrev_b64 v[108:109], v3, v[100:101]", "row (lane&3) of alpha*I")
I("v_mov_b32 v106, 0x3a800000", "1/1024")
I("v_mov_b32 v107, 0x3727c5ac", "eps = 1e-5")
H = 84; T = 100
DPP = ["quad_perm:[1,0,3,2]", "quad_perm:[2,3,0,1]", "row_half_mirror", "row_mirror"]
def m4(d, a, s, acc, c=""): I(f"v_mfma_f32_4x4x4_16b_bf16 v[{d}:{d+3}], v[{a}:{a+1}], v[{s}:{s+1}], " + (f"v[{d}:{d+3}]" if acc else "0"), c)
def m16(a, s, acc, c=""): I(f"v_mfma_f32_16x16x32_bf16 v[120:123], v[{a}:{a+3}], v[{s}:{s+3}], " + ("v[120:123]" if acc else "0"), c)
def dpp(i, src=T, c=""): I(f"v_add_f32_dpp v{T}, v{src}, v{src} {DPP[i]} row_mask:0xf bank_mask:0xf", c)
def centre():
    C("d = h - mean, then sum of d*d")
    for j in range(8): I(f"v_pk_add_f32 v[{H+2*j}:{H+2*j+1}], v[{H+2*j}:{H+2*j+1}], v[{T}:{T+1}] op_sel_hi:[1,0]")
    I(f"v_pk_mul_f32 v[{T}:{T+1}], v[{H}:{H+1}], v[{H}:{H+1}]")
    for j in range(1, 8): I(f"v_pk_fma_f32 v[{T}:{T+1}], v[{H+2*j}:{H+2*j+1}], v[{H+2*j}:{H+2*j+1}], v[{T}:{T+1}]")
    I(f"v_add_f32 v{T}, v{T}, v{T+1}")
def finish(b, a):
    C("d *= g fills the wait states of the cross-lane sum")
    for i in range(4):
        for j in (2*i, 2*i+1): I(f"v_pk_mul_f32 v[{H+2*j}:{H+2*j+1}], v[{H+2*j}:{H+2*j+1}], v[{52+2*j}:{53+2*j}]")
        dpp(i)
    I("s_nop 0")
    for i in range(4): I(f"v_readlane_b32 s{20+i}, v{T}, {16*i}")
    I(f"v_fma_f32 v{T}, s20, v106, v107")
    for i in range(1, 4): I(f"v_fmac_f32 v{T}, s{20+i}, v106", "var + eps" if i == 3 else "")
    I(f"v_rsq_f32 v{T}, v{T}")
    I("s_nop 0")
    C("out = d*g*rstd + b")
    for half in range(2):
        for j in range(4):
            h = H + 8*half + 2*j; k = 68 + 8*half + 2*j
            I(f"v_pk_fma_f32 v[{h}:{h+1}], v[{h}:{h+1}], v[{T}:{T+1}], v[{k}:{k+1}] op_sel_hi:[1,0,1]")
            I(f"v_cvt_pk_bf16_f32 v{b+4+4*half+j}, v{h}, v{h+1}")
        I(f"global_store_dwordx4 {a}, v[{b+4+4*half}:{b+7+4*half}], s[14:15]" + (" offset:1024" if half else ""))
C("======== row 0")
b = 4
I("s_waitcnt vmcnt(6)", "x lo, f lo")
m16(112, b, False); m16(116, b+4, True)
m4(H, 108, b, False); m4(H+4, 108, b+2, False)
I("s_nop 0")
m4(H, 110, b+4, True); m4(H+4, 110, b+6, True)
I("s_waitcnt vmcnt(4)", "x hi, f hi")
m16(112, b+8, True); m16(116, b+12, True)
I("s_nop 7", "MFMA result -> VALU read")
dpp(0, 120)
m4(H+8, 108, b+8, False); m4(H+12, 108, b+10, False)
dpp(1)
m4(H+8, 110, b+12, True); m4(H+12, 110, b+14, True)
dpp(2)
I("s_nop 1")
dpp(3, T, "-mean in every lane")
centre()
C("row 1 goes in flight")
loads(20, "v125")
I("s_waitcnt vmcnt(4)", "g, b")
for j in range(16):
    I(f"v_lshlrev_b32 v{52+2*j}, 16, v{36+j}")
    I(f"v_and_b32 v{53+2*j}, s16, v{36+j}")
finish(b, "v1")
C("======== row 1 (each piece is consumed as it lands; the two stores of row 0 are the youngest operations)")
b = 20
I("s_waitcnt vmcnt(5)", "x lo")
m16(112, b, False); m4(H, 108, b, False); m4(H+4, 108, b+2, False)
I("s_waitcnt vmcnt(4)", "f lo")
m16(116, b+4, True); m4(H, 110, b+4, True); m4(H+4, 110, b+6, True)
I("s_waitcnt vmcnt(3)", "x hi")
m16(112, b+8, True); m4(H+8, 108, b+8, False); m4(H+12, 108, b+10, False)
I("s_waitcnt vmcnt(2)", "f hi")
m16(116, b+12, True)
I("s_nop 7", "MFMA result -> VALU read")
dpp(0, 120)
m4(H+8, 110, b+12, True); m4(H+12, 110, b+14, True)
dpp(1)
I("s_nop 1")
dpp(2)
I("s_nop 1")
dpp(3, T, "-mean in every lane")
centre()
finish(b, "v125")
e("L_end:")
I("s_endpgm")
e('.section .rodata,"a"')
e(".p2align 6")
e(f".amdhsa_kernel {NAME}")
for l in ["next_free_vgpr 126", "next_free_sgpr 24", "accum_offset 128", "group_segment_fixed_size 0", "kernarg_size 64",
          "user_sgpr_count 2", "user_sgpr_kernarg_segment_ptr 1", "system_sgpr_workgroup_id_x 1", "float_denorm_mode_32 3"]:
    e("  .amdhsa_" + l)
e(".end_amdhsa_kernel")
open("standalone__deepnorm__sampling.s", "w").write("\n".join(L) + "\n")
```

```python
import sys, subprocess
from gen import HEADER, NAME, PROBE_KD, probe_code

DPP6 = ["quad_perm:[1,0,3,2] row_mask:0xf", "quad_perm:[2,3,0,1] row_mask:0xf",
        "row_half_mirror row_mask:0xf", "row_mirror row_mask:0xf",
        "row_bcast:15 row_mask:0xa", "row_bcast:31 row_mask:0xc"]

def gen(wpb=4, R=4, D=2, mapping="lin", ldx="", ldgb="", st="", unpack="valu", gbpos="after",
        stamps="", probe=None, align=12, early=0, da="", db="", eager=0, lpos="pre", nv=0, kdalign=6, prepad=0, rx=0, fine=0, tight=0, ntw=-1, ntf="nt", touch=0, prio=0, specw=4, order="xfxf", upw=-1, tmap="stride"):
    nwaves = 4096 // R
    nwg = nwaves // wpb
    D = min(D, R)
    L = []; e = L.append
    lds = 4096 if gbpos == "lds" else 0
    if probe:
        e(HEADER + f"; @launch kernel={NAME} grid=({nwg},1,1) block=({wpb*64},1,1) lds={lds}")
        e("; @launch kernel=probe_kernel grid=(1,1,1) block=(64,1,1) lds=0")
    else:
        e(HEADER + f"; @launch grid=({nwg},1,1) block=({wpb*64},1,1) lds={lds}")
    e('.amdgcn_target "amdgcn-amd-amdhsa--gfx950"')
    e(".text"); e(f".globl {NAME}")
    if align > 8: e(f".p2align {align}")
    if prepad: e(f".fill {prepad//4}, 4, 0xbf810000")
    e(".p2align 8"); e(f".type {NAME},@function"); e(f"{NAME}:")
    def stamp(i):
        if stamps == "full" or (stamps == "light" and i == 0) or (stamps == "ends" and i in (0, 4)):
            e(f"    s_memrealtime s[{32+2*i}:{33+2*i}]")
    def mark(name):
        if stamps in ("delta", "abs"):
            if name == da: e("    s_memrealtime s[32:33]")
            if name == db: e("    s_memrealtime s[34:35]")
    lw = wpb.bit_length() - 1; lr = R.bit_length() - 1
    RAW = 4
    GBR = RAW + 16*R
    GF = GBR + 16
    BF = GF + 16
    H = BF + 16
    T = H + 16
    AI = T + 8
    CX = AI + 4
    CF = CX + 4
    SD = CF + 4
    ADR = SD + 4
    NV = max(ADR + R, nv)
    stamp(0); mark("start")
    if tight:
        assert R == 2 and wpb == 8 and unpack == "opt" and gbpos in ("after", "first", "split", "first2", "spec") and D == 1
        e("    s_load_dwordx8 s[4:11], s[0:1], 0     ; x f g b")
        e("    s_load_dwordx4 s[12:15], s[0:1], 32")
        e(f"    s_cmpk_ge_u32 s2, {nwg}")
        e("    s_cbranch_scc1 L_end")
        if prio: e("    s_setprio 3")
        if tmap == "wgs": e("    s_lshl_b32 s3, s2, 15")
        else: e("    s_lshl_b32 s3, s2, 14")
        e("    v_lshlrev_b32 v2, 4, v0")
        e("    s_movk_i32 s16, 0xfc00")
        e("    v_and_b32 v3, s16, v2                 ; wave*1024")
        e("    v_add3_u32 v1, v2, v3, s3")
        e("    v_sub_u32 v2, v2, v3                  ; lane*16")
        if gbpos == "spec" or upw >= 0:
            e("    v_readfirstlane_b32 s19, v0")
        addr = {0: ("v1", 0), 1: (f"v{ADR+1}", 0)}
    if not tight:
        e("    s_load_dwordx8 s[4:11], s[0:1], 0     ; x f g b")
        e("    s_load_dwordx4 s[12:15], s[0:1], 32")
        e(f"    s_cmp_ge_u32 s2, {nwg}")
        e("    s_cbranch_scc1 L_end")
        e("    v_and_b32 v2, 63, v0")
        e("    v_lshrrev_b32 v1, 6, v0")
        e("    v_lshlrev_b32 v2, 4, v2               ; lane*16")
        if gbpos == "lds":
            e("    v_readfirstlane_b32 s19, v1")
        if mapping.startswith("numa"):
            flip = int(mapping[4])
            assert nwg == 256
            e("    s_lshr_b32 s20, s2, 5")
            e("    s_xor_b32 s20, s20, s2")
            if flip: e("    s_not_b32 s20, s20")
            e("    s_and_b32 s20, s20, 4")
            e("    s_and_b32 s21, s2, 3")
            e("    s_lshl_b32 s21, s21, 4")
            e("    s_or_b32 s20, s20, s21")
            e("    s_lshr_b32 s21, s2, 3")
            e("    s_lshl_b32 s21, s21, 6")
            e("    s_or_b32 s20, s20, s21")
            e("    s_lshl_b32 s3, s20, 11")
            if wpb == 8:
                e("    v_and_b32 v3, 4, v1")
                e("    v_add_u32 v1, v1, v3                  ; w0 w1 . w2")
                roff = [0, 1 << 22]
            else:
                roff = [0, 1 << 14, 1 << 22, (1 << 22) + (1 << 14)]
            e(f"    v_lshl_add_u32 v1, v1, 11, v2")
            rstep = -2
        elif mapping.startswith("b:"):
            bits = mapping[2:]
            assert len(bits) == 12
            wpos = [i for i, c in enumerate(bits) if c == "w"]; rpos = [i for i, c in enumerate(bits) if c == "r"]
            assert len(wpos) == lw and len(rpos) == lr
            gpos = {}
            for i, c in enumerate(bits):
                if c.isdigit(): gpos[int(c)] = i
            assert sorted(gpos) == list(range(12 - lw - lr))
            runs = []
            for k in sorted(gpos):
                if runs and runs[-1][0] + runs[-1][2] == k and runs[-1][1] + runs[-1][2] == gpos[k]:
                    runs[-1][2] += 1
                else:
                    runs.append([k, gpos[k], 1])
            first = True
            for k, p, n in runs:
                e(f"    s_bfe_u32 s20, s2, {(n << 16) | k}")
                if first:
                    e(f"    s_lshl_b32 s3, s20, {11+p}")
                else:
                    e(f"    s_lshl_b32 s20, s20, {11+p}")
                    e(f"    s_or_b32 s3, s3, s20")
                first = False
            if wpos and wpos != list(range(wpos[0], wpos[0] + lw)):
                e(f"    v_mov_b32 v{T}, v2")
                for j, p in enumerate(wpos):
                    e(f"    v_bfe_u32 v3, v1, {j}, 1")
                    e(f"    v_lshl_add_u32 v{T}, v3, {11+p}, v{T}")
                e(f"    v_mov_b32 v1, v{T}")
            elif wpos:
                e(f"    v_lshl_add_u32 v1, v1, {11+wpos[0]}, v2")
            else:
                e(f"    v_mov_b32 v1, v2")
            rstep = -2
            roff = [sum(((r >> j) & 1) << (11 + rpos[j]) for j in range(lr)) for r in range(R)]
        elif mapping == "stride":
            e(f"    s_lshl_b32 s3, s2, {11+lw}")
            e(f"    v_lshl_add_u32 v1, v1, 11, v2")
            rstep = nwaves * 2048
        elif mapping == "wgs":
            e(f"    s_lshl_b32 s3, s2, {11+lw+lr}")
            e(f"    v_lshl_add_u32 v1, v1, 11, v2")
            rstep = wpb * 2048
        elif mapping == "xstride":
            e(f"    s_and_b32 s20, s2, 7")
            e(f"    s_lshr_b32 s21, s2, 3")
            e(f"    s_lshl_b32 s20, s20, {(nwg//8).bit_length()-1}")
            e(f"    s_or_b32 s20, s20, s21")
            e(f"    s_lshl_b32 s3, s20, {11+lw}")
            e(f"    v_lshl_add_u32 v1, v1, 11, v2")
            rstep = nwaves * 2048
        elif mapping == "pair":
            e(f"    s_lshl_b32 s3, s2, {12+lw}")
            e(f"    v_lshl_add_u32 v1, v1, 12, v2")
            rstep = -1
        else:
            e(f"    s_lshl_b32 s3, s2, {11+lw+lr}")
            e(f"    v_lshl_add_u32 v1, v1, {11+lr}, v2")
            rstep = 2048
        addr = {}
        if rstep == 2048:
            ngrp = (R + 3)//4
            if R > 2:
                e(f"    s_add_u32 s3, s3, 4096")
            e("    v_add_u32 v1, s3, v1")
            for gidx in range(ngrp):
                reg = "v1" if gidx == 0 else f"v{ADR+gidx}"
                if gidx: e(f"    v_add_u32 {reg}, {8192*gidx}, v1")
                for r in range(4*gidx, min(R, 4*gidx+4)):
                    addr[r] = (reg, (r - 4*gidx)*2048 - (4096 if R > 2 else 0))
        elif rstep == -2:
            e("    v_add_u32 v1, s3, v1")
            for r in range(R):
                if rx and r % 2:
                    reg = f"v{ADR+r}"
                    e(f"    v_xor_b32 {reg}, {roff[r] ^ rx}, v1")
                    addr[r] = (reg, 0)
                elif roff[r] <= 2048:
                    addr[r] = ("v1", roff[r])
                else:
                    reg = f"v{ADR+r}"
                    e(f"    v_add_u32 {reg}, {roff[r]}, v1")
                    addr[r] = (reg, 0)
        elif rstep == -1:
            e("    v_add_u32 v1, s3, v1")
            for r in range(R):
                p = r // 2
                reg = "v1" if p == 0 else f"v{ADR+p}"
                if p and r % 2 == 0: e(f"    v_add_u32 {reg}, {nwaves*4096*p}, v1")
                addr[r] = (reg, 2048*(r % 2))
        else:
            e("    v_add_u32 v1, s3, v1")
            for r in range(R):
                reg = "v1" if r == 0 else f"v{ADR+r}"
                if r: e(f"    v_add_u32 {reg}, {rstep*r}, v1")
                addr[r] = (reg, 0)
    def off(o): return f"offset:{o} " if o else ""
    def consts():
        e("    s_mov_b32 s16, 0xffff0000")
        if unpack == "opt":
            for j in range(4): e(f"    v_mov_b32 v{CF+j}, 0xba80ba80          ; bf16 pair of -1/1024")
        if unpack in ("mfma", "opt"):
            e(f"    v_and_b32 v3, 3, v0")
            e(f"    v_lshlrev_b32 v3, 4, v3               ; 16*(lane&3)")
            e(f"    v_mov_b32 v{T}, 0x3f80")
            e(f"    v_mov_b32 v{T+1}, 0")
            e(f"    v_lshlrev_b64 v[{AI+2}:{AI+3}], v3, v[{T}:{T+1}]")
    if not tight: consts()
    if gbpos == "lds":
        e("    s_and_b32 s19, s19, 3")
        e("    s_lshl_b32 m0, s19, 10")
        e("    s_and_b32 s22, m0, 1024")
        e(f"    v_add_u32 v{T+4}, s22, v2")
        e("    s_cmp_lt_u32 s19, 2")
    e("    s_waitcnt lgkmcnt(0)")
    stamp(1); mark("karg")
    if gbpos == "lds":
        e("    s_cselect_b64 s[8:9], s[8:9], s[10:11]")
    ops = []
    def loads(r):
        b = RAW + 16*r; a, o = addr[r]
        if order == "xxff":
            e(f"    global_load_dwordx4 v[{b}:{b+3}], {a}, s[4:5] {off(o)}{ldx}")
            e(f"    global_load_dwordx4 v[{b+8}:{b+11}], {a}, s[4:5] {off(o+1024)}{ldx}")
            e(f"    global_load_dwordx4 v[{b+4}:{b+7}], {a}, s[6:7] {off(o)}{ldx}")
            e(f"    global_load_dwordx4 v[{b+12}:{b+15}], {a}, s[6:7] {off(o+1024)}{ldx}")
            ops.extend([("x", r, 0), ("x", r, 1), ("l", r, 0), ("l", r, 1)])
            return
        e(f"    global_load_dwordx4 v[{b}:{b+3}], {a}, s[4:5] {off(o)}{ldx}")
        e(f"    global_load_dwordx4 v[{b+4}:{b+7}], {a}, s[6:7] {off(o)}{ldx}")
        e(f"    global_load_dwordx4 v[{b+8}:{b+11}], {a}, s[4:5] {off(o+1024)}{ldx}")
        e(f"    global_load_dwordx4 v[{b+12}:{b+15}], {a}, s[6:7] {off(o+1024)}{ldx}")
        ops.extend([("x", r, 0), ("l", r, 0), ("x", r, 1), ("l", r, 1)])
    def gbloads():
        e(f"    global_load_dwordx4 v[{GBR}:{GBR+3}], v2, s[8:9] {ldgb}")
        e(f"    global_load_dwordx4 v[{GBR+4}:{GBR+7}], v2, s[8:9] offset:1024 {ldgb}")
        e(f"    global_load_dwordx4 v[{GBR+8}:{GBR+11}], v2, s[10:11] {ldgb}")
        e(f"    global_load_dwordx4 v[{GBR+12}:{GBR+15}], v2, s[10:11] offset:1024 {ldgb}")
        ops.extend([("gb",)]*4)
    waited = [-1]
    def wait_for(tag):
        last = max(i for i, o in enumerate(ops) if o == tag)
        if last > waited[0]:
            n = len(ops) - 1 - last
            if upw >= 0 and tag != ("gb",) and tag[1] == 0:
                lab = f"L_w{len(L)}"
                e(f"    s_waitcnt vmcnt({n + 4})")
                e(f"    s_cbranch_scc1 {lab}")
                e(f"    s_waitcnt vmcnt({n})")
                e(f"{lab}:")
                waited[0] = last
                return
            e(f"    s_waitcnt vmcnt({n})")
            if gbpos == "spec" and (tag == ("gb",) or tag[1] == 0):
                lab = f"L_w{len(L)}"
                e(f"    s_cbranch_scc1 {lab}")
                e(f"    s_waitcnt vmcnt({n - 4})")
                e(f"{lab}:")
            waited[0] = last
    def gbunpack():
        if gbpos == "lds":
            e("    s_waitcnt lgkmcnt(0)")
        else:
            wait_for(("gb",))
        mark("gbl")
        for j in range(8):
            e(f"    v_lshlrev_b32 v{GF+2*j}, 16, v{GBR+j}")
            e(f"    v_and_b32 v{GF+2*j+1}, s16, v{GBR+j}")
        for j in range(8):
            e(f"    v_lshlrev_b32 v{BF+2*j}, 16, v{GBR+8+j}")
            e(f"    v_and_b32 v{BF+2*j+1}, s16, v{GBR+8+j}")
    if gbpos in ("first", "first2"): gbloads()
    if gbpos == "split":
        e(f"    global_load_dwordx4 v[{GBR}:{GBR+3}], v2, s[8:9] {ldgb}")
        e(f"    global_load_dwordx4 v[{GBR+4}:{GBR+7}], v2, s[8:9] offset:1024 {ldgb}")
        ops.extend([("gb",)]*2)
    if gbpos == "lds":
        e(f"    global_load_lds_dwordx4 v{T+4}, s[8:9] {ldgb}")
        ops.append(("gb",))
    loads(0)
    if prio == 1: e("    s_setprio 0")
    e("    s_load_dword s17, s[12:13], 0")
    if gbpos == "mid": gbloads()
    for r in range(1, D): loads(r)
    if gbpos == "after": gbloads()
    if gbpos == "spec":
        e(f"    s_cmpk_lt_u32 s19, {64*specw}")
        e("    s_cbranch_scc1 L_nog")
        gbloads()
        e("L_nog:")
    if gbpos == "split":
        e(f"    global_load_dwordx4 v[{GBR+8}:{GBR+11}], v2, s[10:11] {ldgb}")
        e(f"    global_load_dwordx4 v[{GBR+12}:{GBR+15}], v2, s[10:11] offset:1024 {ldgb}")
        ops.extend([("gb",)]*2)
    if prio == 2: e("    s_setprio 0")
    if tight:
        if ntw >= 0:
            e("    v_readfirstlane_b32 s19, v0")
        e(f"    v_xor_b32 v{ADR+1}, {((1 << 14) if tmap == "wgs" else (1 << 22)) ^ rx}, v1")
        if upw >= 0:
            e(f"    s_cmpk_lt_u32 s19, {64*upw}")
            e("    s_cbranch_scc1 L_noup")
            n0 = len(ops); loads(1); del ops[n0:]
            e("L_noup:")
        if touch:
            e(f"    v_and_b32 v{ADR}, s16, v{ADR+1}")
            e(f"    global_load_dword v{T+2}, v{ADR}, s[4:5]")
            e(f"    global_load_dword v{T+3}, v{ADR}, s[6:7]")
            ops.extend([("t",), ("t",)])
        consts()
    mark("issued")
    e("    s_waitcnt lgkmcnt(0)")
    mark("alpha")
    if unpack == "opt":
        e(f"    s_lshl_b32 s18, s17, 16")
        e(f"    v_mov_b32 v{T+5}, 0xba800000          ; -1/1024")
        e(f"    v_mul_f32 v{CX}, s18, v{T+5}")
        e(f"    v_lshrrev_b32 v{CX+1}, 16, v{CX}")
        e(f"    v_and_or_b32 v{CX}, v{CX}, s16, v{CX+1}")
        for j in range(1, 4): e(f"    v_mov_b32 v{CX+j}, v{CX}")
    if unpack in ("mfma", "opt"):
        e(f"    s_and_b32 s17, s17, 0xffff")
        e(f"    v_mov_b32 v{T}, s17")
        e(f"    v_lshlrev_b64 v[{AI}:{AI+1}], v3, v[{T}:{T+1}]")
    else:
        e("    s_lshl_b32 s18, s17, 16")
    if unpack != "opt": e(f"    v_mov_b32 v{T+5}, 0xba800000          ; -1/1024")
    e(f"    v_mov_b32 v{T+6}, 0x3a800000          ; 1/1024")
    e(f"    v_mov_b32 v{T+7}, 0x3727c5ac          ; eps")
    if gbpos == "spec":
        e(f"    s_cmpk_ge_u32 s19, {64*specw}")
    if upw >= 0:
        e(f"    s_cmpk_ge_u32 s19, {64*upw}")
    if gbpos == "first": gbunpack()
    if gbpos == "lds":
        wait_for(("gb",))
        e("    s_barrier")
        for j in range(4):
            e(f"    ds_read_b128 v[{GBR+4*j}:{GBR+4*j+3}], v2 offset:{1024*j}")
    def reduce(v, s):
        for ctl in DPP6:
            e("    s_nop 1")
            e(f"    v_add_f32_dpp v{v}, v{v}, v{v} {ctl} bank_mask:0xf")
        e("    s_nop 0")
        e(f"    v_readlane_b32 s{s}, v{v}, 63")
    nxt = D
    def m4(d, a, src, c):
        cc = "0" if c is None else f"v[{c}:{c+3}]"
        e(f"    v_mfma_f32_4x4x4_16b_bf16 v[{d}:{d+3}], v[{a}:{a+1}], v[{src}:{src+1}], {cc}")
    def m16(a, src, first):
        cc = "0" if first else f"v[{SD}:{SD+3}]"
        e(f"    v_mfma_f32_16x16x32_bf16 v[{SD}:{SD+3}], v[{a}:{a+3}], v[{src}:{src+3}], {cc}")
    def dpp(v, i, src=None):
        src = v if src is None else src
        e(f"    v_add_f32_dpp v{v}, v{src}, v{src} {DPP6[i]} bank_mask:0xf")
    for r in range(R if unpack == "opt" else 0):
        b = RAW + 16*r
        if fine and r >= R - fine:
            wait_for(("x", r, 0))
            m16(CX, b, True); m4(H, AI, b, None); m4(H+4, AI, b+2, None)
            if order == "xxff":
                wait_for(("x", r, 1))
                m16(CX, b+8, False); m4(H+8, AI, b+8, None); m4(H+12, AI, b+10, None)
            wait_for(("l", r, 0)); mark(f"got{r}0")
            m16(CF, b+4, False); m4(H, AI+2, b+4, H); m4(H+4, AI+2, b+6, H+4)
            if order != "xxff":
                wait_for(("x", r, 1))
                m16(CX, b+8, False); m4(H+8, AI, b+8, None); m4(H+12, AI, b+10, None)
            wait_for(("l", r, 1)); mark(f"got{r}1")
            if r == R-1: stamp(2)
            if nxt < R and lpos == "pre":
                loads(nxt); nxt += 1
            m16(CF, b+12, False)
            e("    s_nop 7")
            dpp(T, 0, SD)
            m4(H+8, AI+2, b+12, H+8); m4(H+12, AI+2, b+14, H+12)
            dpp(T, 1)
            e("    s_nop 1")
            dpp(T, 2)
            e("    s_nop 1")
            dpp(T, 3)
        else:
            wait_for(("l", r, 0)); mark(f"got{r}0")
            if early and nxt < R:
                loads(nxt); nxt += 1
            m16(CX, b, True); m16(CF, b+4, False)
            m4(H, AI, b, None); m4(H+4, AI, b+2, None)
            e("    s_nop 0")
            m4(H, AI+2, b+4, H); m4(H+4, AI+2, b+6, H+4)
            wait_for(("l", r, 1)); mark(f"got{r}1")
            if r == R-1: stamp(2)
            if r == 0 and gbpos == "late": gbloads()
            if not early and nxt < R and lpos == "pre":
                loads(nxt); nxt += 1
            m16(CX, b+8, False); m16(CF, b+12, False)
            e("    s_nop 7")
            dpp(T, 0, SD)
            m4(H+8, AI, b+8, None); m4(H+12, AI, b+10, None)
            dpp(T, 1)
            m4(H+8, AI+2, b+12, H+8); m4(H+12, AI+2, b+14, H+12)
            dpp(T, 2)
            e("    s_nop 1")
            dpp(T, 3)
        for j in range(8):
            h = H + 2*j
            e(f"    v_pk_add_f32 v[{h}:{h+1}], v[{h}:{h+1}], v[{T}:{T+1}] op_sel_hi:[1,0]")
        e(f"    v_pk_mul_f32 v[{T}:{T+1}], v[{H}:{H+1}], v[{H}:{H+1}]")
        for j in range(1, 8):
            h = H + 2*j
            e(f"    v_pk_fma_f32 v[{T}:{T+1}], v[{h}:{h+1}], v[{h}:{h+1}], v[{T}:{T+1}]")
        e(f"    v_add_f32 v{T}, v{T}, v{T+1}")
        mark(f"sq{r}")
        if lpos == "mid" and nxt < R:
            if upw >= 0: e("    s_cbranch_scc1 L_hasl")
            loads(nxt); nxt += 1
            if upw >= 0: e("L_hasl:")
            if gbpos == "spec":
                e("    s_cbranch_scc1 L_hasg")
                n0 = len(ops); gbloads(); del ops[n0:]
                e("L_hasg:")
        if r == 0 and eager and nxt < R:
            wait_for(("l", 1, 2 - eager))
            loads(nxt); nxt += 1
        if r == 0 and gbpos != "first":
            gbunpack()
        for i in range(4):
            for j in (2*i, 2*i+1):
                h = H + 2*j
                e(f"    v_pk_mul_f32 v[{h}:{h+1}], v[{h}:{h+1}], v[{GF+2*j}:{GF+2*j+1}]")
            dpp(T, i)
        e("    s_nop 0")
        for i in range(4):
            e(f"    v_readlane_b32 s{20+i}, v{T}, {16*i}")
        e(f"    v_fma_f32 v{T}, s20, v{T+6}, v{T+7}")
        for i in range(1, 4):
            e(f"    v_fmac_f32 v{T}, s{20+i}, v{T+6}")
        mark(f"rsq{r}")
        e(f"    v_rsq_f32 v{T}, v{T}")
        e("    s_nop 0")
        a, o = addr[r]
        for half in range(2):
            for j in range(4):
                h = H + half*8 + 2*j; k = half*8 + 2*j
                e(f"    v_pk_fma_f32 v[{h}:{h+1}], v[{h}:{h+1}], v[{T}:{T+1}], v[{BF+k}:{BF+k+1}] op_sel_hi:[1,0,1]")
                e(f"    v_cvt_pk_bf16_f32 v{b+4+4*half+j}, v{h}, v{h+1}")
            if lpos == "prest" and half == 0 and nxt < R:
                loads(nxt); nxt += 1
            if ntw >= 0 and r == R-1:
                if half == 0: e(f"    s_cmp_ge_u32 s19, {64*ntw}")
                e(f"    s_cbranch_scc1 L_nt{half}")
                e(f"    global_store_dwordx4 {a}, v[{b+4+4*half}:{b+7+4*half}], s[14:15] {off(o+1024*half)}{st}")
                e(f"    s_branch L_st{half}")
                e(f"L_nt{half}:")
                e(f"    global_store_dwordx4 {a}, v[{b+4+4*half}:{b+7+4*half}], s[14:15] {off(o+1024*half)}{ntf}")
                e(f"L_st{half}:")
            else:
                e(f"    global_store_dwordx4 {a}, v[{b+4+4*half}:{b+7+4*half}], s[14:15] {off(o+1024*half)}{st}")
            ops.append(("s", r))
        if lpos == "post" and nxt < R:
            loads(nxt); nxt += 1
        mark(f"done{r}")
    for r in range(R if unpack != "opt" else 0):
        b = RAW + 16*r
        for half in range(2):
            wait_for(("l", r, half))
            if r == R-1 and half == 1: stamp(2)
            mark(f"got{r}{half}")
            if half == (0 if early else 1) and nxt < R:
                loads(nxt); nxt += 1
            if unpack == "valu":
                for j in range(4):
                    h = H + half*8 + 2*j
                    x = b + 8*half + j; f = x + 4
                    e(f"    v_lshlrev_b32 v{T}, 16, v{x}")
                    e(f"    v_and_b32 v{T+1}, s16, v{x}")
                    e(f"    v_lshlrev_b32 v{h}, 16, v{f}")
                    e(f"    v_and_b32 v{h+1}, s16, v{f}")
                    e(f"    v_pk_fma_f32 v[{h}:{h+1}], v[{T}:{T+1}], s[18:19], v[{h}:{h+1}] op_sel_hi:[1,0,1]")
            else:
                x = b + 8*half; f = x + 4; h = H + 8*half
                e(f"    v_mfma_f32_4x4x4_16b_bf16 v[{h}:{h+3}], v[{AI}:{AI+1}], v[{x}:{x+1}], 0")
                e(f"    v_mfma_f32_4x4x4_16b_bf16 v[{h+4}:{h+7}], v[{AI}:{AI+1}], v[{x+2}:{x+3}], 0")
                e(f"    s_nop 0")
                e(f"    v_mfma_f32_4x4x4_16b_bf16 v[{h}:{h+3}], v[{AI+2}:{AI+3}], v[{f}:{f+1}], v[{h}:{h+3}]")
                e(f"    v_mfma_f32_4x4x4_16b_bf16 v[{h+4}:{h+7}], v[{AI+2}:{AI+3}], v[{f+2}:{f+3}], v[{h+4}:{h+7}]")
                if half == 1:
                    e(f"    v_pk_add_f32 v[{T}:{T+1}], v[{H}:{H+1}], v[{H+2}:{H+3}]")
                    e(f"    v_pk_add_f32 v[{T+2}:{T+3}], v[{H+4}:{H+5}], v[{H+6}:{H+7}]")
                    e(f"    v_pk_add_f32 v[{T}:{T+1}], v[{T}:{T+1}], v[{T+2}:{T+3}]")
                    e(f"    s_nop 1")
        if unpack == "valu":
            e(f"    v_pk_add_f32 v[{T}:{T+1}], v[{H}:{H+1}], v[{H+2}:{H+3}]")
            e(f"    v_pk_add_f32 v[{T+2}:{T+3}], v[{H+4}:{H+5}], v[{H+6}:{H+7}]")
            e(f"    v_pk_add_f32 v[{T}:{T+1}], v[{T}:{T+1}], v[{T+2}:{T+3}]")
        e(f"    v_pk_add_f32 v[{b}:{b+1}], v[{H+8}:{H+9}], v[{H+10}:{H+11}]")
        e(f"    v_pk_add_f32 v[{T+2}:{T+3}], v[{H+12}:{H+13}], v[{H+14}:{H+15}]")
        e(f"    v_pk_add_f32 v[{T}:{T+1}], v[{T}:{T+1}], v[{b}:{b+1}]")
        e(f"    v_pk_add_f32 v[{T}:{T+1}], v[{T}:{T+1}], v[{T+2}:{T+3}]")
        e(f"    v_add_f32 v{T}, v{T}, v{T+1}")
        reduce(T, 20)
        e("    s_nop 1")
        e(f"    v_mul_f32 v{T}, s20, v{T+5}            ; -mean")
        for j in range(8):
            h = H + 2*j
            e(f"    v_pk_add_f32 v[{h}:{h+1}], v[{h}:{h+1}], v[{T}:{T+1}] op_sel_hi:[1,0]")
        e(f"    v_pk_mul_f32 v[{T}:{T+1}], v[{H}:{H+1}], v[{H}:{H+1}]")
        e(f"    v_pk_mul_f32 v[{T+2}:{T+3}], v[{H+2}:{H+3}], v[{H+2}:{H+3}]")
        for j in range(2, 8):
            h = H + 2*j; a = T + 2*(j % 2)
            e(f"    v_pk_fma_f32 v[{a}:{a+1}], v[{h}:{h+1}], v[{h}:{h+1}], v[{a}:{a+1}]")
        e(f"    v_pk_add_f32 v[{T}:{T+1}], v[{T}:{T+1}], v[{T+2}:{T+3}]")
        e(f"    v_add_f32 v{T}, v{T}, v{T+1}")
        reduce(T, 21)
        e("    s_nop 1")
        e(f"    v_fma_f32 v{T}, s21, v{T+6}, v{T+7}")
        e(f"    v_rsq_f32 v{T}, v{T}")
        mark(f"rsq{r}")
        if r == 0 and gbpos != "first":
            gbunpack()
        else:
            e("    s_nop 0")
        mark(f"norm{r}")
        a, o = addr[r]
        for half in range(2):
            for j in range(4):
                h = H + half*8 + 2*j; k = half*8 + 2*j
                e(f"    v_pk_mul_f32 v[{h}:{h+1}], v[{h}:{h+1}], v[{T}:{T+1}] op_sel_hi:[1,0]")
                e(f"    v_pk_fma_f32 v[{h}:{h+1}], v[{h}:{h+1}], v[{GF+k}:{GF+k+1}], v[{BF+k}:{BF+k+1}]")
                e(f"    v_cvt_pk_bf16_f32 v{b+4+4*half+j}, v{h}, v{h+1}")
            e(f"    global_store_dwordx4 {a}, v[{b+4+4*half}:{b+7+4*half}], s[14:15] {off(o+1024*half)}{st}")
            ops.append(("s", r))
        mark(f"done{r}")
    if stamps:
        stamp(3)
        if stamps in ("full", "ends"): e("    s_waitcnt vmcnt(0)")
        stamp(4)
        e("    s_load_dwordx2 s[30:31], s[0:1], 56")
        e(f"    v_lshrrev_b32 v3, 6, v0")
        e(f"    s_lshl_b32 s3, s2, {lw}")
        e(f"    v_add_u32 v3, s3, v3")
        e(f"    v_lshlrev_b32 v3, 6, v3")
        e("    s_waitcnt lgkmcnt(0)")
        if stamps == "full":
            e("    s_getreg_b32 s28, hwreg(HW_REG_XCC_ID)")
            e("    s_getreg_b32 s29, hwreg(HW_REG_HW_ID)")
            e(f"    v_mov_b32 v{H}, s28"); e(f"    v_mov_b32 v{H+1}, s29")
            e(f"    global_store_dwordx2 v3, v[{H}:{H+1}], s[30:31] offset:56")
            for i in range(5): e(f"    v_mov_b32 v{H+4+i}, s{32+2*i}")
            e(f"    global_store_dwordx4 v3, v[{H+4}:{H+7}], s[30:31]")
            e(f"    global_store_dword v3, v{H+8}, s[30:31] offset:16")
        elif stamps == "delta":
            e(f"    s_sub_u32 s34, s34, s32")
            e(f"    v_mov_b32 v{H}, 0")
            e(f"    v_mov_b32 v{H+1}, s34")
            e(f"    global_store_dwordx2 v3, v[{H}:{H+1}], s[30:31]")
        elif stamps == "abs":
            e(f"    v_mov_b32 v{H}, s32")
            e(f"    v_mov_b32 v{H+1}, s34")
            e(f"    global_store_dwordx2 v3, v[{H}:{H+1}], s[30:31]")
        elif stamps == "ends":
            e(f"    v_mov_b32 v{H}, s32")
            e(f"    v_mov_b32 v{H+1}, s40")
            e(f"    global_store_dwordx2 v3, v[{H}:{H+1}], s[30:31]")
        else:
            e(f"    v_mov_b32 v{H}, s32")
            e(f"    global_store_dword v3, v{H}, s[30:31]")
    e("L_end:"); e("    s_endpgm")
    if probe: L.append(probe_code(*probe, nw=(1024 if probe[2] < 0 else nwaves)))
    e('.section .rodata,"a"'); e(f".p2align {kdalign}"); e(f".amdhsa_kernel {NAME}")
    e(f"  .amdhsa_next_free_vgpr {NV}"); e(f"  .amdhsa_next_free_sgpr {48 if stamps else 24}")
    e(f"  .amdhsa_accum_offset {(NV+3)//4*4}")
    for l in ["group_segment_fixed_size 0","kernarg_size 64","user_sgpr_count 2","user_sgpr_kernarg_segment_ptr 1",
              "system_sgpr_workgroup_id_x 1", "float_denorm_mode_32 3"]:
        e("  .amdhsa_" + l)
    e(".end_amdhsa_kernel")
    if probe: e(PROBE_KD)
    return "\n".join(L) + "\n", nwg, wpb*64, lds

if __name__ == "__main__":
    out = []
    for sp in sys.argv[1:]:
        name, *kv = sp.split(",")
        kw = {}
        for x in kv:
            k, v = x.split("=")
            if k == "probe":
                p = v.split("/"); kw[k] = (int(p[0]), p[1], int(p[2]), p[3], int(p[4]))
            else:
                kw[k] = int(v) if v.lstrip("-").isdigit() else v.replace("+", " ")
        s, nwg, blk, lds = gen(**kw)
        p = f"v/{name}.s"
        open(p, "w").write(s)
        subprocess.check_call(["python3", "mkco.py", p])
        d = subprocess.check_output(f"llvm-objdump -d --mcpu=gfx950 v/{name}.co | grep -E '<(standalone__deepnorm__sampling_kernel|L_end)>:'", shell=True, text=True).split()
        print("   kernel at", d[0][-5:], "end", d[2][-5:] if len(d) > 2 else "?")
        ns = {"full": 5, "light": 1, "ends": 2, "delta": 2, "abs": 2, "": 0}[kw.get("stamps", "")]
        out.append(f"v/{name}.co:{nwg}:{blk}:{lds}:{ns}")
    print(" ".join(out))
    print(", ".join('"'+o.split(":")[0]+'"' for o in out))
    print(", ".join('"'+o.split(":")[0][:-3]+'.s"' for o in out))
```
